```python
import torch

def _softmax(x, axis=-1):
    return torch.softmax(x, dim=axis)
def _gelu(x):
    return torch.nn.functional.gelu(x, approximate="tanh")
def _silu(x):
    return torch.nn.functional.silu(x)
def _sigmoid(x):
    return torch.sigmoid(x)
def _layernorm(x, axis=-1, eps=1e-5):
    m = x.mean(dim=axis, keepdim=True)
    v = x.var(dim=axis, keepdim=True, unbiased=False)
    return (x - m) / torch.sqrt(v + eps)
def _scatter_add(tgt, idx, src, axis=0):
    return tgt.clone().index_add_(axis, idx, src)
def _segment_sum(src, seg, n):
    out = torch.zeros((n,) + src.shape[1:], dtype=src.dtype)
    return out.index_add_(0, seg, src)
def _pad(x, pw):
    flat = tuple(v for pair in reversed(pw) for v in pair)
    return torch.nn.functional.pad(x, flat)

kernel_name = 'standalone__gqa_softmax__near_ridge'

def setup_inputs():

    _w = (lambda a: (lambda t: t.to(torch.bfloat16) if t.is_floating_point() else t)(torch.as_tensor(a)))
    B, Hq, Hkv, Sq, Sk, D = 16, 32, 8, 320, 320, 128
    return {
        "q": _w((lambda *s: torch.randn(*s, dtype=torch.bfloat16) * 0.8)(B, Hq, Sq, D)),
        "k": _w((lambda *s: torch.randn(*s, dtype=torch.bfloat16) * 0.8)(B, Hkv, Sk, D)),
        "v": _w((lambda *s: torch.randn(*s, dtype=torch.bfloat16) * 0.05)(B, Hkv, Sk, D)),
    }

def reference(q, k, v):
    B, Hq, Sq, D = q.shape
    Hkv = k.shape[1]
    rep = Hq // Hkv
    k = (lambda x, n, axis: torch.repeat_interleave(x, n, dim=axis))(k, rep, axis=1)
    v = (lambda x, n, axis: torch.repeat_interleave(x, n, dim=axis))(v, rep, axis=1)
    scale = D ** -0.5
    scores = torch.einsum("bhqd,bhkd->bhqk", q, k) * scale
    p = _softmax(scores, axis=-1)
    return torch.einsum("bhqk,bhkd->bhqd", p, v)
```

```python
KN = "standalone__gqa_softmax__near_ridge_kernel"
HEADER_COMMENTS = """; Kernarg layout for this problem (48 bytes, ptrs only, base s[0:1]):
"""
def wrap(body, grid=256, block=512, lds=163840, vgpr=256, sgpr=102, accum=256):
    return f"""{HEADER_COMMENTS}; @launch grid=({grid},1,1) block=({block},1,1) lds={lds}
.amdgcn_target "amdgcn-amd-amdhsa--gfx950"
.text
.globl {KN}
.p2align 8
.type {KN},@function
{KN}:
{body}
s_endpgm
.section .rodata,"a"
.p2align 6
.amdhsa_kernel {KN}
  .amdhsa_next_free_vgpr {vgpr}
  .amdhsa_next_free_sgpr {sgpr}
  .amdhsa_accum_offset {accum}
  .amdhsa_group_segment_fixed_size 0
  .amdhsa_kernarg_size 48
  .amdhsa_user_sgpr_count 2
  .amdhsa_user_sgpr_kernarg_segment_ptr 1
  .amdhsa_system_sgpr_workgroup_id_x 1
.end_amdhsa_kernel
"""

def wrap_multi(kernels):
    s = ""
    for (n, b, blk, vg) in kernels:
        s += f"; @launch kernel={n} grid=(256,1,1) block=({blk},1,1) lds=163840\n"
    s += '.amdgcn_target "amdgcn-amd-amdhsa--gfx950"\n.text\n'
    for (n, b, blk, vg) in kernels:
        b = b.replace("L_", f"L{n}_")
        s += f".globl {n}\n.p2align 8\n.type {n},@function\n{n}:\n{b}\ns_endpgm\n"
    s += '.section .rodata,"a"\n'
    for (n, b, blk, vg) in kernels:
        s += f""".p2align 6
.amdhsa_kernel {n}
  .amdhsa_next_free_vgpr {vg}
  .amdhsa_next_free_sgpr 102
  .amdhsa_accum_offset 256
  .amdhsa_group_segment_fixed_size 0
  .amdhsa_kernarg_size 48
  .amdhsa_user_sgpr_count 2
  .amdhsa_user_sgpr_kernarg_segment_ptr 1
  .amdhsa_system_sgpr_workgroup_id_x 1
.end_amdhsa_kernel
"""
    return s
```

```python
import re
class Ins:
    __slots__ = ("text", "kind", "rd", "wr", "cost", "srcc", "deps", "done", "tag", "passes")
    def __init__(self, text, kind, rd=(), wr=(), cost=4, srcc=(), deps=(), tag=None, passes=0):
        self.text = text; self.kind = kind; self.rd = set(rd); self.wr = set(wr); self.cost = cost
        self.srcc = set(srcc); self.deps = list(deps); self.done = False; self.tag = tag; self.passes = passes
def rng(b, n): return range(b, b + n)
def vr(b, n=1): return f"v{b}" if n == 1 else f"v[{b}:{b+n-1}]"

def states(ins):
    if ins.kind == "nop":
        return int(ins.text.split()[1]) + 1
    if ins.kind in ("label", "comment"): return 0
    return 1

VALU_KINDS = ("valu", "trans", "perml")
def need(prev, ins):
    n = 0
    if prev.kind in VALU_KINDS:
        if ins.kind == "mfma" and prev.wr & ins.rd: n = max(n, 2)
        if prev.kind == "trans" and ins.kind in ("valu", "perml", "mfma") and prev.wr & ins.rd: n = max(n, 1)
        if ins.kind == "perml" and prev.wr & ins.rd: n = max(n, 2)
        if ins.kind == "rdlane" and prev.wr & ins.rd: n = max(n, 1)
    if prev.kind == "mfma":
        p = prev.passes
        tab_ab = {2: 5, 4: 8, 8: 12, 16: 20}[p]
        tab_c = {2: 4, 4: 6, 8: 10, 16: 18}[p]
        war = {2: 1, 4: 3, 8: 7, 16: 15}[p]
        if ins.kind == "mfma":
            ab = ins.rd - ins.srcc
            if prev.wr & ab: n = max(n, tab_ab)
            if prev.wr & ins.srcc:
                if not (prev.wr == ins.srcc and prev.passes == ins.passes): n = max(n, tab_c)
                elif p == 2: n = max(n, 2)
            if prev.wr & ins.wr and not (prev.wr & ins.srcc): n = max(n, tab_c)
        else:
            if prev.wr & (ins.rd | ins.wr): n = max(n, tab_ab)
            if ins.kind in VALU_KINDS and prev.srcc & ins.wr: n = max(n, war)
    if prev.kind == "store":
        if prev.rd & ins.wr: n = max(n, 2)
    return n

class Stream:
    def __init__(self):
        self.out = []
        self.lds_issued = []
        self.lds_done = 0
    def gap_needed(self, ins):
        dist = 0; worst = 0
        for prev in reversed(self.out[-40:]):
            if prev.kind == "label" and prev.tag == "barrier_hazard": break
            r = need(prev, ins) - dist
            if r > worst: worst = r
            dist += states(prev)
            if dist >= 20: break
        return worst
    def emit(self, ins):
        if isinstance(ins, str):
            ins = raw(ins)
        g = self.gap_needed(ins)
        while g > 0:
            k = min(g, 16)
            self.out.append(Ins(f"s_nop {k-1}", "nop")); g -= k
        self.out.append(ins); ins.done = True
        if ins.kind == "lds": self.lds_issued.append(ins.tag)
        return ins
    def wait_lds(self, tag):
        idx = len(self.lds_issued) - 1 - self.lds_issued[::-1].index(tag)
        if idx < self.lds_done: return False
        n = len(self.lds_issued) - 1 - idx
        assert n <= 15
        self.out.append(Ins(f"s_waitcnt lgkmcnt({n})", "wait"))
        self.lds_done = idx + 1
        return True
    def lds_pending(self, tag):
        idx = len(self.lds_issued) - 1 - self.lds_issued[::-1].index(tag)
        return idx >= self.lds_done
    def wait_lds_all(self):
        self.out.append(Ins("s_waitcnt lgkmcnt(0)", "wait")); self.lds_done = len(self.lds_issued)
    def text(self):
        return "\n".join(("" if i.kind == "label" else "    ") + i.text for i in self.out)

_vre = re.compile(r"\bv\[(\d+):(\d+)\]|\bv(\d+)\b")
def regs_of(op):
    s = set()
    for m in _vre.finditer(op):
        if m.group(1): s |= set(range(int(m.group(1)), int(m.group(2)) + 1))
        else: s.add(int(m.group(3)))
    return s
TRANS = ("v_exp_f32", "v_rcp_f32", "v_log_f32", "v_rsq_f32", "v_sqrt_f32")
def raw(text, tag=None, deps=()):
    t = text.split(";")[0].strip()
    if t.endswith(":"): return Ins(text, "label")
    if not t or t.startswith("."): return Ins(text, "comment")
    mn, _, ops = t.partition(" ")
    ops = [o.strip() for o in ops.split(",")]
    if mn == "s_nop": return Ins(text, "nop")
    if mn == "s_waitcnt": return Ins(text, "wait")
    if mn.startswith("s_"): return Ins(text, "salu")
    if mn.startswith("v_mfma"):
        p = {"16x16x32": 4, "32x32x16": 8, "16x16x4": 8}[mn.split("_")[3]]
        c = regs_of(ops[3])
        return Ins(text, "mfma", rd=regs_of(ops[1]) | regs_of(ops[2]) | c, wr=regs_of(ops[0]), cost=8, srcc=c, passes=p, tag=tag, deps=deps)
    if mn.startswith("v_permlane"):
        r = regs_of(ops[0]) | regs_of(ops[1])
        return Ins(text, "perml", rd=r, wr=r, tag=tag, deps=deps)
    if mn.startswith("v_readfirstlane") or mn.startswith("v_readlane"):
        return Ins(text, "rdlane", rd=regs_of(ops[1]), tag=tag, deps=deps)
    if mn.startswith("v_cmp"):
        return Ins(text, "valu", rd=regs_of(",".join(ops[1:])), tag=tag, deps=deps)
    if mn.startswith("v_"):
        rd = regs_of(",".join(ops[1:]))
        if mn.startswith("v_fmac") or mn.startswith("v_writelane"): rd |= regs_of(ops[0])
        k = "trans" if mn.split("_e")[0] in TRANS or mn in TRANS else "valu"
        return Ins(text, k, rd=rd, wr=regs_of(ops[0]), cost=8 if k == "trans" else 4, tag=tag, deps=deps)
    if mn.startswith("ds_read") or mn.startswith("ds_bpermute"):
        return Ins(text, "lds", rd=regs_of(",".join(ops[1:])), wr=regs_of(ops[0]), tag=tag, deps=deps)
    if mn.startswith("ds_write"):
        return Ins(text, "lds", rd=regs_of(",".join(ops)), tag=tag, deps=deps)
    if mn.startswith("buffer_load"):
        return Ins(text, "vmem", rd=regs_of(ops[1]), wr=regs_of(ops[0]), tag=tag, deps=deps)
    if mn.startswith("buffer_store"):
        return Ins(text, "store", rd=regs_of(ops[0]) | regs_of(ops[1]), tag=tag, deps=deps)
    raise ValueError(text)

def check(out):
    bad = 0
    for i, ins in enumerate(out):
        dist = 0
        for j in range(i - 1, max(-1, i - 40), -1):
            prev = out[j]
            if need(prev, ins) > dist:
                print("HAZARD", j, prev.text, "->", i, ins.text, "dist", dist); bad += 1
            dist += states(prev)
            if dist >= 20: break
    return bad
```

```python
import sys, struct, math
from common import *
from sched import *

OPT = dict(depth=8, wgran=2, store_flags="nt", q_flags="nt", kv_flags="nt", t_flags="nt", stamps=False, m0=False)
for a in sys.argv[2:]:
    k, v = a.split("="); OPT[k] = eval(v) if not k.endswith("_flags") else v.replace("+", " ")
def f32(x): return "0x%08x" % struct.unpack("<I", struct.pack("<f", x))[0]
CSCALE = math.log2(math.e) / math.sqrt(128.0)

O = 0; L = 64; Q = 72; S = 104; P = 136; RING = 152; NEGM = 184; ONES = 192
aKR = [196, 197]; aKRh = [198, 199]; aV = 200; aVh = 201
vQ = 202; vO = 203; vT = 204; MO = [205, 206]; T0 = 208; JUNK = 207
aKW = [216, 217]; vK = 218; vV = 219; LANE = 220
NV = 224
def Oreg(t, db): return O + t * 32 + db * 4
def Lreg(t): return L + 4 * t
def Qreg(t, kk): return Q + t * 16 + kk * 4
def Sreg(par, t, kb): return S + par * 16 + t * 8 + kb * 4
def Preg(par, t): return P + par * 8 + t * 4
def ring(F): return RING + 4 * (F % 8)
sQ, sK, sV, sO = 8, 12, 16, 20
sW = 24; sKV = 25; sT0 = 26; sT1 = 27; sN = 28; sC = 29; sSEL0 = 30; sSEL1 = 31; sX = 32; sY = 33; sFAIL = 34; sIT = 35; sREDO = 36; sN0 = 37; sN1 = 38; sBASE = 39; sTHR = 40
sWS = 44
VBASE = 81920

st = Stream(); e = st.emit

def stamp(i):
    if not OPT["stamps"]: return
    e(f"s_memrealtime s[{50+2*i}:{51+2*i}]")

e("s_cmp_ge_u32 s2, 256")
e("s_cbranch_scc1 L_end")
stamp(0)
e("s_load_dwordx4 s[4:7], s[0:1], 0")
e("s_load_dwordx4 s[40:43], s[0:1], 16")
if OPT["stamps"]: e("s_load_dwordx2 s[44:45], s[0:1], %d" % (32 if OPT["stamps"] == 2 else 40))
e(f"v_lshrrev_b32 v1, 6, v0")
e(f"v_and_b32 v{LANE}, 63, v0")
e(f"v_readfirstlane_b32 s{sW}, v1")
e(f"s_and_b32 s{sX}, s2, 7")
e(f"s_lshr_b32 s{sY}, s2, 4")
e(f"s_lshl_b32 s{sY}, s{sY}, 3")
e(f"s_add_u32 s{sX}, s{sX}, s{sY}")
e(f"s_mul_i32 s{sKV}, s{sX}, 81920")
e(f"s_mul_i32 s{sBASE}, s{sX}, 327680")
e(f"s_lshr_b32 s{sY}, s2, 3")
e(f"s_and_b32 s{sY}, s{sY}, 1")
e(f"s_mul_i32 s{sY}, s{sY}, 163840")
e(f"s_add_u32 s{sBASE}, s{sBASE}, s{sY}")
e(f"s_lshl_b32 s{sY}, s{sW}, 13")
e(f"s_add_u32 s{sBASE}, s{sBASE}, s{sY}")
e(f"s_mov_b32 s{sT0}, s{sBASE}")
e(f"s_add_u32 s{sT1}, s{sBASE}, 4096")
e(f"s_lshr_b32 s{sY}, s{sW}, 2")
e(f"s_sub_u32 s{sN}, 3, s{sY}")
e(f"v_and_b32 v2, 15, v{LANE}")
e(f"v_lshrrev_b32 v3, 4, v{LANE}")
e(f"v_lshlrev_b32 v{vQ}, 8, v2")
e(f"v_lshl_add_u32 v{vQ}, v3, 4, v{vQ}")
e(f"v_lshlrev_b32 v{vK}, 4, v{LANE}")
e(f"v_lshlrev_b32 v4, 4, v2")
e(f"v_lshl_add_u32 v{vV}, v3, 11, v4")
e("s_waitcnt lgkmcnt(0)")
for (d, b, n) in ((sQ, 4, 41943040), (sK, 6, 10485760), (sV, 40, 10485760), (sO, 42, 41943040)):
    e(f"s_mov_b32 s{d}, s{b}")
    e(f"s_mov_b32 s{d+1}, s{b+1}")
    e(f"s_mov_b32 s{d+2}, {n}")
    e(f"s_mov_b32 s{d+3}, 0x00020000")
if OPT["stamps"]:
    e("s_mov_b32 s46, %s" % ("256" if OPT["stamps"] == 2 else "0x10000000")); e("s_mov_b32 s47, 0x00020000")

def load_q(s0, s1):
    for t in range(2):
        for kk in range(4):
            e(f"buffer_load_dwordx4 {vr(Qreg(t,kk),4)}, v{vQ}, s[{sQ}:{sQ+3}], s{s1 if t else s0} offen offset:{kk*64} {OPT['q_flags']}")
def load_k(buf, sx, sy):
    for i in range(8):
        e(f"buffer_load_dwordx4 {vr(buf+4*i,4)}, v{vK}, s[{sK}:{sK+3}], s{sy if i >= 4 else sx} offen offset:{(i&3)*1024} {OPT['kv_flags']}")
def load_v(buf, sx):
    for i in range(8):
        e(f"buffer_load_dwordx4 {vr(buf+4*i,4)}, v{vV}, s[{sV}:{sV+3}], s{sx} offen offset:{i*256} {OPT['kv_flags']}")
def conv_k(buf, w0, w1):
    for i in range(8):
        for d in range(4):
            r = buf + 4 * i + d
            a, b = T0 + 2 * (d & 1), T0 + 2 * (d & 1) + 1
            e(f"v_lshlrev_b32 v{a}, 16, v{r}")
            e(f"v_and_b32 v{b}, 0xffff0000, v{r}")
            e(f"v_mul_f32 v{a}, s{sC}, v{a}")
            e(f"v_mul_f32 v{b}, s{sC}, v{b}")
            e(f"v_cvt_pk_bf16_f32 v{r}, v{a}, v{b}")
        e(f"ds_write_b128 v{w1 if (i>>1)&1 else w0}, {vr(buf+4*i,4)} offset:{(i&1)*4096 + (i>>2)*128}")
def tr_v(buf, w, outb):
    for p in range(4):
        for h in range(2):
            o = outb + 4 * (2 * p + h)
            for jj in range(4):
                e(f"v_perm_b32 v{o+jj}, v{buf+4*(2*jj+1)+p}, v{buf+4*(2*jj)+p}, s{sSEL1 if h else sSEL0}")
            e(f"ds_write_b128 v{w}, {vr(o,4)} offset:{(2*p+h)*1024}")

load_q(sT0, sT1)
SB0, SB1, SB2 = 8, 40, S
e(f"s_and_b32 s{sIT}, s{sW}, 3")
e(f"s_lshl_b32 s{sX}, s{sIT}, 13")
e(f"s_add_u32 s{sX}, s{sX}, s{sKV}")
e(f"s_add_u32 s{sY}, s{sX}, 4096")
e(f"s_add_u32 s{sN0}, s{sX}, 32768")
e(f"s_add_u32 s{sN1}, s{sX}, {32768+4096}")
e(f"s_cmp_ge_u32 s{sW}, 4")
e("s_cbranch_scc1 L_ldB")
load_k(SB0, sX, sY)
load_v(SB1, sN0)
e("s_branch L_ldDone")
e("L_ldB:")
load_v(SB0, sX)
load_k(SB1, sN0, sN1)
e(f"s_and_b32 s{sX}, s{sW}, 1")
e(f"s_lshl_b32 s{sX}, s{sX}, 13")
e(f"s_add_u32 s{sX}, s{sX}, s{sKV}")
e(f"s_add_u32 s{sX}, s{sX}, 65536")
e(f"s_add_u32 s{sY}, s{sX}, 4096")
e(f"s_cmp_ge_u32 s{sW}, 6")
e("s_cbranch_scc1 L_ldB2")
load_k(SB2, sX, sY)
e("s_branch L_ldDone")
e("L_ldB2:")
load_v(SB2, sX)
e("L_ldDone:")
e(f"s_mov_b32 s{sC}, {f32(CSCALE)}")
e(f"s_mov_b32 s{sSEL0}, 0x05040100")
e(f"s_mov_b32 s{sSEL1}, 0x07060302")
e(f"s_mov_b32 s{sTHR}, {f32(2.0**40)}")
e(f"s_mov_b32 s{sFAIL}, 0")
e(f"s_mov_b32 s{sREDO}, 0")
e(f"v_lshl_add_u32 v{vO}, v3, 10, v4")
e(f"v_lshlrev_b32 v{vT}, 7, v{LANE}")
e(f"v_xor_b32 v5, v{LANE}, v3")
e(f"v_lshlrev_b32 v{aKR[0]}, 4, v5")
e(f"v_xor_b32 v{aKR[1]}, 64, v{aKR[0]}")
e(f"v_add_u32 v{aKRh[0]}, 0x10000, v{aKR[0]}")
e(f"v_add_u32 v{aKRh[1]}, 0x10000, v{aKR[1]}")
e(f"v_add_u32 v{aV}, {VBASE}, v{vK}")
e(f"v_add_u32 v{aVh}, 0x10000, v{aV}")
e(f"v_and_b32 v5, 7, v2")
e(f"v_xor_b32 v5, v5, v3")
e(f"v_lshlrev_b32 v5, 4, v5")
e(f"v_lshl_add_u32 v{aKW[0]}, v2, 8, v5")
e(f"v_xor_b32 v{aKW[1]}, 64, v{aKW[0]}")
for i in range(4): e(f"v_mov_b32 v{ONES+i}, 0x3f803f80")
e(f"v_mov_b32 v{MO[0]}, 0xff800000")
e(f"v_mov_b32 v{MO[1]}, 0xff800000")
e(f"s_lshl_b32 s{sX}, s{sIT}, 13")
e(f"v_add_u32 v4, s{sX}, v{aKW[0]}")
e(f"v_add_u32 v5, s{sX}, v{aKW[1]}")
e(f"v_add_u32 v6, s{sX}, v{aV}")
e(f"s_cmp_ge_u32 s{sW}, 4")
e("s_cbranch_scc1 L_stB")
e("s_waitcnt vmcnt(8)")
conv_k(SB0, 4, 5)
e(f"v_add_u32 v6, 0x8000, v6")
e("s_waitcnt vmcnt(0)")
tr_v(SB1, 6, RING)
e("s_branch L_stDone")
e("L_stB:")
e("s_waitcnt vmcnt(16)")
tr_v(SB0, 6, RING)
e(f"v_add_u32 v4, 0x8000, v4")
e(f"v_add_u32 v5, 0x8000, v5")
e("s_waitcnt vmcnt(8)")
conv_k(SB1, 4, 5)
e(f"s_and_b32 s{sX}, s{sW}, 1")
e(f"s_lshl_b32 s{sX}, s{sX}, 13")
e(f"s_add_u32 s{sX}, s{sX}, 65536")
e(f"v_add_u32 v4, s{sX}, v{aKW[0]}")
e(f"v_add_u32 v5, s{sX}, v{aKW[1]}")
e(f"v_add_u32 v6, s{sX}, v{aV}")
e("s_waitcnt vmcnt(0)")
e(f"s_cmp_ge_u32 s{sW}, 6")
e("s_cbranch_scc1 L_stB2")
conv_k(SB2, 4, 5)
e("s_branch L_stDone")
e("L_stB2:")
tr_v(SB2, 6, RING)
e("L_stDone:")
e("s_waitcnt lgkmcnt(0)")
stamp(1)
e("s_barrier")
stamp(2)

FR = []
FR += [("K", 0, f) for f in range(8)]
for j in range(9):
    FR += [("K", j + 1, f) for f in range(8)]
    FR += [("V", j, f) for f in range(8)]
FR += [("V", 9, f) for f in range(8)]
NF = len(FR)
DEPTH = OPT["depth"]; WG = OPT["wgran"]
def frag_read(F):
    kind, tl, f = FR[F % NF]
    off = tl * 8192 + f * 1024
    if kind == "K":
        a = aKR[f & 1] if off < 65536 else aKRh[f & 1]
    else:
        a = aV if off < 65536 else aVh
    return raw(f"ds_read_b128 {vr(ring(F),4)}, v{a} offset:{off & 65535}", tag=("F", F))

e("L_restart:")
st.lds_issued = []; st.lds_done = 0
for F in range(DEPTH): e(frag_read(F))
e("s_waitcnt vmcnt(0)")
e("L_tile:")
e(f"s_add_u32 s{sN0}, s{sT0}, 65536")
e(f"s_add_u32 s{sN1}, s{sT1}, 65536")
e("s_waitcnt vmcnt(8)")
e(f"s_cmp_le_u32 s{sN}, 1")
e("s_cbranch_scc1 L_notouch")
e(f"buffer_load_dword v{JUNK}, v{vT}, s[{sQ}:{sQ+3}], s{sN0} offen {OPT['t_flags']}")
e("L_notouch:")
tile_start = len(st.out)

queue = []
def fill(budget):
    progress = True
    while budget > 0 and progress:
        progress = False
        for x in queue[:6]:
            if x.cost <= budget and all(d.done for d in x.deps) and st.gap_needed(x) == 0:
                e(x); queue.remove(x); budget -= x.cost; progress = True
                break
    return budget
def flush(pred=lambda x: True):
    while True:
        need_ = [x for x in queue if pred(x)]
        if not need_: break
        last = max(queue.index(x) for x in need_)
        cand = [x for x in queue[:last + 1] if all(d.done for d in x.deps)]
        cand.sort(key=lambda x: st.gap_needed(x))
        x = cand[0]; e(x); queue.remove(x)

def softmax_ops(j, sub=False):
    par = j & 1
    ops = []
    for kb in range(2):
        for t in range(2):
            for h in range(2):
                ex = []
                for r in (2 * h, 2 * h + 1):
                    s = Sreg(par, t, kb) + r
                    dep = []
                    if sub:
                        sb = raw(f"v_add_f32 v{s}, v{NEGM+4*t}, v{s}", tag=("sm", j)); ops.append(sb); dep = [sb]
                    x = raw(f"v_exp_f32 v{s}, v{s}", tag=("sm", j), deps=dep); ops.append(x); ex.append(x)
                s = Sreg(par, t, kb) + 2 * h
                ops.append(raw(f"v_cvt_pk_bf16_f32 v{Preg(par,t)+2*kb+h}, v{s}, v{s+1}", tag=("sm", j), deps=ex))
    return ops

Fcur = [0]
def group(mfmas, extra_after=None):
    F = Fcur[0]
    if st.lds_pending(("F", F)):
        st.wait_lds(("F", min(F + WG - 1, F + DEPTH - 1)))
    for i, m in enumerate(mfmas):
        e(m)
        b = 8
        if i == len(mfmas) - 1:
            e(frag_read(F + DEPTH)); b -= 4
            if st.lds_pending(("F", F + 1)): b -= 4
        fill(b)
    Fcur[0] += 1
def qk(j, first=False):
    par = j & 1
    for f in range(8):
        kb, kk = f >> 2, f & 3
        ms = []
        for t in range(2):
            d = vr(Sreg(par, t, kb), 4)
            c = d if kk else ("0" if first or OPT["m0"] else vr(NEGM + 4 * t, 4))
            ms.append(f"v_mfma_f32_16x16x32_bf16 {d}, {vr(ring(Fcur[0]),4)}, {vr(Qreg(t,kk),4)}, {c}")
        group(ms)
def pv(j, after_group=None):
    par = j & 1
    flush(lambda x: x.tag == ("sm", j))
    for t in range(2):
        d = vr(Lreg(t), 4)
        e(f"v_mfma_f32_16x16x32_bf16 {d}, {vr(Preg(par,t),4)}, {vr(ONES,4)}, {d if j else 0}")
        fill(8)
    for db in range(8):
        ms = []
        for t in range(2):
            d = vr(Oreg(t, db), 4)
            ms.append(f"v_mfma_f32_16x16x32_bf16 {d}, {vr(Preg(par,t),4)}, {vr(ring(Fcur[0]),4)}, {d if j else 0}")
        group(ms)
        if after_group: after_group(db)

qk(0, first=True)
if not OPT["m0"]:
    m = [T0, T0 + 1]
    for t in range(2):
        s0 = Sreg(0, t, 0)
        e(f"v_max3_f32 v{m[t]}, v{s0}, v{s0+1}, v{MO[t]}")
        e(f"v_max3_f32 v{m[t]}, v{s0+2}, v{s0+3}, v{m[t]}")
    for t in range(2):
        s0 = Sreg(0, t, 1)
        e(f"v_max3_f32 v{m[t]}, v{s0}, v{s0+1}, v{m[t]}")
        e(f"v_max3_f32 v{m[t]}, v{s0+2}, v{s0+3}, v{m[t]}")
    e(f"v_permlane32_swap_b32 v{m[0]}, v{m[1]}")
    e(f"v_max_f32 v{m[0]}, v{m[0]}, v{m[1]}")
    e(f"v_mov_b32 v{m[1]}, v{m[0]}")
    e(f"v_permlane16_swap_b32 v{m[0]}, v{m[1]}")
    e(f"v_max_f32 v{m[0]}, v{m[0]}, v{m[1]}")
    e(f"v_sub_f32 v{NEGM}, 0, v{m[0]}")
    e(f"v_sub_f32 v{NEGM+4}, 0, v{m[0]}")
    e(f"v_permlane32_swap_b32 v{NEGM}, v{NEGM+4}")
    for t in range(2):
        for r in range(1, 4):
            e(f"v_mov_b32 v{NEGM+4*t+r}, v{NEGM+4*t}")
queue += softmax_ops(0, sub=not OPT["m0"])
for j in range(9):
    qk(j + 1)
    if j == 8:
        e(f"s_cmp_le_u32 s{sN}, 1")
        e("s_cbranch_scc1 L_noq")
        load_q(sN0, sN1)
        e("L_noq:")
    flush(lambda x: x.tag == ("sm", j))
    queue += softmax_ops(j + 1)
    pv(j)
RINV = [[T0 + 4 * t + r for r in range(4)] for t in range(2)]
PK = S
epi_mul = {}
def after9(db):
    if db == 1:
        ck = []
        a = raw(f"v_max3_f32 v{NEGM}, v{L}, v{L+1}, v{L+2}", tag="ep"); queue.append(a)
        b = raw(f"v_max3_f32 v{NEGM+1}, v{L+3}, v{L+4}, v{L+5}", tag="ep"); queue.append(b)
        c = raw(f"v_max3_f32 v{NEGM}, v{L+6}, v{L+7}, v{NEGM}", tag="ep", deps=[a]); queue.append(c)
        d = raw(f"v_max_f32 v{NEGM}, v{NEGM}, v{NEGM+1}", tag="ep", deps=[b, c]); queue.append(d)
        queue.append(raw(f"v_cmp_lt_f32 vcc, s{sTHR}, v{NEGM}", tag="ep", deps=[d]))
        for t in range(2):
            for r in range(4):
                x = raw(f"v_rcp_f32 v{RINV[t][r]}, v{Lreg(t)+r}", tag="ep"); queue.append(x); epi_mul[("r", t, r)] = x
    if db >= 1:
        dbs = [0, 1] if db == 1 else [db]
        for d in dbs:
            for t in range(2):
                for r in range(4):
                    o = Oreg(t, d) + r
                    x = raw(f"v_mul_f32 v{o}, v{RINV[t][r]}, v{o}", tag="ep", deps=[epi_mul[("r", t, r)]]); queue.append(x); epi_mul[(d, t, r)] = x
        if db & 1:
            for t in range(2):
                for r in range(4):
                    x = raw(f"v_cvt_pk_bf16_f32 v{PK+(t*4+r)*4+(db>>1)}, v{Oreg(t,db-1)+r}, v{Oreg(t,db)+r}", tag=("pk", t, r),
                            deps=[epi_mul[(db - 1, t, r)], epi_mul[(db, t, r)]])
                    queue.append(x)
pv(9, after_group=after9)
for t in range(2):
    for r in range(4):
        flush(lambda x: x.tag == ("pk", t, r))
        e(f"buffer_store_dwordx4 {vr(PK+(t*4+r)*4,4)}, v{vO}, s[{sO}:{sO+3}], s{sT1 if t else sT0} offen offset:{r*256} {OPT['store_flags']}")
assert not queue
e(f"s_cmp_lg_u64 vcc, 0")
e(f"s_cselect_b32 s{sX}, 1, 0")
e(f"s_lshl_b32 s{sX}, s{sX}, s{sN}")
e(f"s_or_b32 s{sFAIL}, s{sFAIL}, s{sX}")
if OPT["stamps"]:
    e(f"s_cmp_eq_u32 s{sN}, 2"); e("s_cbranch_scc0 L_ns3"); stamp(3); e("L_ns3:")
e(f"s_mov_b32 s{sT0}, s{sN0}")
e(f"s_mov_b32 s{sT1}, s{sN1}")
e(f"s_sub_u32 s{sN}, s{sN}, 1")
e(f"s_cmp_lg_u32 s{sN}, 0")
tile_end = len(st.out)
e("s_cbranch_scc1 L_tile")
assert Fcur[0] == NF
body = st.out[tile_start:tile_end]
assert check(body + body) == 0
e(f"s_cmp_lg_u32 s{sREDO}, 0")
e(f"s_cselect_b32 s{sFAIL}, s{sREDO}, s{sFAIL}")
e(f"s_and_b32 s{sFAIL}, s{sFAIL}, 14")
e(f"s_cmp_eq_u32 s{sFAIL}, 0")
e("s_cbranch_scc1 L_done")
e(f"s_ff1_i32_b32 s{sX}, s{sFAIL}")
e(f"s_bitset0_b32 s{sFAIL}, s{sX}")
e(f"s_or_b32 s{sREDO}, s{sFAIL}, 1")
e(f"s_lshr_b32 s{sY}, s{sW}, 2")
e(f"s_sub_u32 s{sY}, 3, s{sY}")
e(f"s_sub_u32 s{sY}, s{sY}, s{sX}")
e(f"s_lshl_b32 s{sY}, s{sY}, 16")
e(f"s_add_u32 s{sT0}, s{sBASE}, s{sY}")
e(f"s_add_u32 s{sT1}, s{sT0}, 4096")
e(f"s_mov_b32 s{sN}, 1")
e("s_waitcnt vmcnt(0) lgkmcnt(0)")
load_q(sT0, sT1)
e(f"v_mov_b32 v{MO[0]}, 0xff800000")
e(f"v_mov_b32 v{MO[1]}, 0xff800000")
e(f"v_mov_b32 v{T0}, v{aKR[0]}")
e(f"v_mov_b32 v{T0+1}, v{aKR[1]}")
e(f"s_mov_b32 s{sIT}, 0")
e("s_waitcnt vmcnt(0)")
e("L_pre:")
for f in range(8):
    e(f"ds_read_b128 {vr(RING+4*f,4)}, v{T0+(f&1)} offset:{f*1024}")
e("s_waitcnt lgkmcnt(0)")
for f in range(8):
    kb, kk = f >> 2, f & 3
    for t in range(2):
        d = vr(Sreg(0, t, kb), 4)
        e(f"v_mfma_f32_16x16x32_bf16 {d}, {vr(RING+4*f,4)}, {vr(Qreg(t,kk),4)}, {d if kk else 0}")
e(f"v_add_u32 v{T0}, 0x2000, v{T0}")
e(f"v_add_u32 v{T0+1}, 0x2000, v{T0+1}")
for t in range(2):
    for i in range(4):
        s0 = Sreg(0, t, 0) + 2 * i
        e(f"v_max3_f32 v{MO[t]}, v{s0}, v{s0+1}, v{MO[t]}")
e(f"s_add_u32 s{sIT}, s{sIT}, 1")
e(f"s_cmp_lt_u32 s{sIT}, 10")
e("s_nop 7")
e("s_cbranch_scc1 L_pre")
e("s_branch L_restart")
e("L_done:")
if OPT["stamps"]:
    stamp(4)
    e("s_waitcnt vmcnt(0)")
    stamp(5)
    e("s_waitcnt lgkmcnt(0)")
    for i in range(6): e(f"v_mov_b32 v{8+i}, s{50+2*i}")
    e("s_getreg_b32 s62, hwreg(HW_REG_HW_ID)")
    e("s_getreg_b32 s63, hwreg(HW_REG_XCC_ID)")
    e("v_mov_b32 v14, s62"); e("v_mov_b32 v15, s63")
    e(f"s_lshl_b32 s{sX}, s2, 3")
    e(f"s_add_u32 s{sX}, s{sX}, s{sW}")
    e(f"s_lshl_b32 s{sX}, s{sX}, 5")
    e("v_mov_b32 v1, 0")
    e(f"v_cmp_eq_u32 vcc, 0, v{LANE}")
    e("s_and_saveexec_b64 s[4:5], vcc")
    if OPT["stamps"] == 2:
        for i in range(6):
            st.out.append(Ins(f"buffer_atomic_umax v{8+i}, v1, s[44:47], 0 offen offset:{4*i}", "salu"))
            e(f"v_not_b32 v{16+i}, v{8+i}")
            st.out.append(Ins(f"buffer_atomic_umax v{16+i}, v1, s[44:47], 0 offen offset:{32+4*i}", "salu"))
    else:
        e(f"buffer_store_dwordx4 v[8:11], v1, s[44:47], s{sX} offen")
        e(f"buffer_store_dwordx4 v[12:15], v1, s[44:47], s{sX} offen offset:16")
e("L_end:")
assert check(st.out) == 0
open(sys.argv[1], "w").write(wrap(st.text(), vgpr=NV, accum=NV, sgpr=72))
nm = sum(1 for i in body if i.kind == "mfma"); nn = sum(states(i) for i in body if i.kind == "nop")
print("tile body: insts", len(body), "mfma", nm, "nop states", nn, "waits", sum(1 for i in body if i.kind == "wait"))
```

```python
import sys, struct, math
from common import *
from sched import *

OPT = dict(depth=8, wgran=2, store_flags="nt", q_flags="", kv_flags="nt", t_flags="", stamps=False, m0=False, prio=True, align=0, mid=5, bar2=6, touch_at=99, fine=False, ctouch=True, defer=False, st_at=3, stwait=False, lateq=False, bst=False, bprio=0, early1=True, ps=1, kup=2, ibar=True, zq=True, clk=False)
for a in sys.argv[2:]:
    k, v = a.split("="); OPT[k] = eval(v) if not k.endswith("_flags") else v.replace("+", " ")
def f32(x): return "0x%08x" % struct.unpack("<I", struct.pack("<f", x))[0]
CSCALE = math.log2(math.e) / math.sqrt(128.0)

O = 0; L = 64; Q = 72; S = 104; P = 136; RING = 152; NEGM = 184; ONES = 192
aKR = [196, 197]; aKRh = [198, 199]; aV = 200; aVh = 201
vQ = 202; vO = 203; vT = 204; MO = [205, 206]; JUNK = 207; T0 = 208
aKW = 216; aKW2 = 217; vK = 218; vV = 219; LANE = 220; aVW = 221; TR0 = 222; TR1 = 223
XB = 224
NV = 256
def Oreg(t, db): return O + t * 32 + db * 4
def Lreg(t): return L + 4 * t
def Qreg(t, kk): return Q + t * 16 + kk * 4
def Sreg(par, t, kb): return S + par * 16 + t * 8 + kb * 4
def Preg(par, t): return P + par * 8 + t * 4
def ring(F): return RING + 4 * (F % 8)
sQ, sK, sV, sO = 8, 12, 16, 20
sW = 24; sKV = 25; sT0 = 26; sT1 = 27; sN = 28; sC = 29; sSEL0 = 30; sSEL1 = 31; sX = 32; sY = 33; sFAIL = 34; sIT = 35; sREDO = 36
sN0 = 37; sN1 = 38; sBASE = 39; sTHR = 40; sPR = 41; sZ = 42; sTI = 43; sP0 = 48; sP1 = 49; sD = 64; sK2 = 62
VBASE = 81920
st = Stream(); e = st.emit

def stamp():
    if not OPT["stamps"]: return
    e("s_memrealtime s[50:51]"); e("s_memtime s[52:53]"); e("s_waitcnt lgkmcnt(0)")
    e(f"s_mov_b32 m0, s{sTI}")
    e(f"v_writelane_b32 v{TR0}, s50, m0"); e(f"v_writelane_b32 v{TR1}, s52, m0")
    e(f"s_add_u32 s{sTI}, s{sTI}, 1")

FN = [0]
FC = [0]
def fine():
    if not OPT["fine"]: return
    if OPT["clk"]:
        FC[0] += 1
        if FC[0] % 2 == 0: return
        e(f"s_memtime s[{70+4*FN[0]}:{71+4*FN[0]}]"); e(f"s_memrealtime s[{72+4*FN[0]}:{73+4*FN[0]}]"); FN[0] += 1
        return
    e(f"s_memtime s[{70+2*FN[0]}:{71+2*FN[0]}]"); FN[0] += 1
def fine_flush():
    if not OPT["fine"]: return
    e("s_waitcnt lgkmcnt(0)")
    for i in range(FN[0]):
        e(f"s_mov_b32 m0, s{sTI}")
        if OPT["clk"]:
            e(f"v_writelane_b32 v{TR1}, s{70+4*i}, m0"); e(f"v_writelane_b32 v{TR0}, s{72+4*i}, m0")
        else: e(f"v_writelane_b32 v{TR1}, s{70+2*i}, m0")
        e(f"s_add_u32 s{sTI}, s{sTI}, 1")
KB = 8
VBUF = [S, XB, RING]
VOUT = P
MID = OPT["mid"]
e("s_cmp_ge_u32 s2, 256")
e("s_cbranch_scc1 L_end")
e("s_load_dwordx4 s[4:7], s[0:1], 0")
e("s_load_dwordx4 s[44:47], s[0:1], 16")
if OPT["stamps"]:
    e("s_load_dwordx2 s[56:57], s[0:1], 40"); e(f"s_mov_b32 s{sTI}, 0"); e(f"v_mov_b32 v{TR0}, 0"); e(f"v_mov_b32 v{TR1}, 0"); stamp()
e(f"v_lshrrev_b32 v1, 6, v0")
e(f"v_and_b32 v{LANE}, 63, v0")
e(f"v_readfirstlane_b32 s{sW}, v1")
e(f"s_and_b32 s{sX}, s2, 7")
e(f"s_lshr_b32 s{sY}, s2, 4")
e(f"s_lshl_b32 s{sY}, s{sY}, 3")
e(f"s_add_u32 s{sX}, s{sX}, s{sY}")
e(f"s_mul_i32 s{sKV}, s{sX}, 81920")
e(f"v_lshlrev_b32 v{vK}, 4, v{LANE}")
e(f"s_mov_b32 s{sK+2}, 10485760")
e(f"s_mov_b32 s{sK+3}, 0x00020000")
e(f"s_lshl_b32 s{sZ}, s{sW}, 10")
e(f"s_add_u32 s{sZ}, s{sZ}, s{sKV}")
e("s_waitcnt lgkmcnt(0)")
e(f"s_mov_b32 s{sK}, s6")
e(f"s_mov_b32 s{sK+1}, s7")
if OPT["ctouch"]:
    e("s_getpc_b64 s[60:61]")
    e("L_pc:")
    e(f"s_cmp_eq_u32 s{sW}, 0")
    e("s_cselect_b32 s63, 0, L_end-8192-L_pc")
    e("s_add_u32 s60, s60, s63")
    e("s_addc_u32 s61, s61, 0")
    e(f"v_lshlrev_b32 v2, 7, v{LANE}")
    e(f"s_cmp_gt_u32 s{sW}, 1")
    e("s_cbranch_scc1 L_noct")
    st.out.append(Ins(f"global_load_dword v{JUNK}, v2, s[60:61]", "salu"))
    e("L_noct:")
for kt in range(4):
    e(f"buffer_load_dwordx4 {vr(KB+4*kt,4)}, v{vK}, s[{sK}:{sK+3}], s{sZ} offen {OPT['kv_flags']}")
    if kt < 3: e(f"s_add_u32 s{sZ}, s{sZ}, 8192")
for (d, b, n) in ((sQ, 4, 41943040), (sV, 44, 10485760), (sO, 46, 41943040)):
    e(f"s_mov_b32 s{d}, s{b}")
    e(f"s_mov_b32 s{d+1}, s{b+1}")
    e(f"s_mov_b32 s{d+2}, {n}")
    e(f"s_mov_b32 s{d+3}, 0x00020000")
if OPT["stamps"]:
    e("s_mov_b32 s58, 0x10000000"); e("s_mov_b32 s59, 0x00020000")
if OPT["defer"]:
    e(f"s_mov_b32 s{sD}, s46"); e(f"s_mov_b32 s{sD+1}, s47"); e(f"s_mov_b32 s{sD+2}, 0"); e(f"s_mov_b32 s{sD+3}, 0x00020000")
    e(f"s_mov_b32 s{sP0}, 0"); e(f"s_mov_b32 s{sP1}, 0")
e(f"s_mul_i32 s{sBASE}, s{sX}, 327680")
e(f"s_lshr_b32 s{sY}, s2, 3")
e(f"s_and_b32 s{sY}, s{sY}, 1")
e(f"s_mul_i32 s{sY}, s{sY}, 163840")
e(f"s_add_u32 s{sBASE}, s{sBASE}, s{sY}")
e(f"s_lshl_b32 s{sY}, s{sW}, 13")
e(f"s_add_u32 s{sBASE}, s{sBASE}, s{sY}")
e(f"s_mov_b32 s{sT0}, s{sBASE}")
e(f"s_add_u32 s{sT1}, s{sBASE}, 4096")
e(f"v_and_b32 v2, 15, v{LANE}")
e(f"v_lshrrev_b32 v3, 4, v{LANE}")
e(f"v_lshlrev_b32 v4, 4, v2")
e(f"v_lshl_add_u32 v{vV}, v3, 11, v4")
e(f"v_lshlrev_b32 v{vQ}, 8, v2")
e(f"v_lshl_add_u32 v{vQ}, v3, 4, v{vQ}")
def load_q(s0, s1):
    for kk in range(4):
        for t in range(2):
            e(f"buffer_load_dwordx4 {vr(Qreg(t,kk),4)}, v{vQ}, s[{sQ}:{sQ+3}], s{s1 if t else s0} offen offset:{kk*64} {OPT['q_flags']}")
def load_v(b):
    e(f"s_add_u32 s{sY}, s{sZ}, {b*32768}")
    for i in range(8):
        e(f"buffer_load_dwordx4 {vr(VBUF[b]+4*i,4)}, v{vV}, s[{sV}:{sV+3}], s{sY} offen offset:{i*256} {OPT['kv_flags']}")
def load_k2(r):
    for kt in range(2):
        e(f"s_add_u32 s{sY}, s{sK2}, {(4+2*r+kt)*8192}")
        for u in range(2):
            e(f"buffer_load_dwordx4 {vr(KB+16+16*r+8*kt+4*u,4)}, v{vK}, s[{sK}:{sK+3}], s{sY} offen offset:{u*1024} {OPT['kv_flags']}")
def conv(r0, areg, off, emb=()):
    for x in emb: e(x)
    for d in range(4):
        r = r0 + d
        a_, b_ = T0 + 2 * (d & 1), T0 + 2 * (d & 1) + 1
        e(f"v_lshlrev_b32 v{a_}, 16, v{r}")
        e(f"v_and_b32 v{b_}, 0xffff0000, v{r}")
        e(f"v_mul_f32 v{a_}, s{sC}, v{a_}")
        e(f"v_mul_f32 v{b_}, s{sC}, v{b_}")
        e(f"v_cvt_pk_bf16_f32 v{r}, v{a_}, v{b_}")
    e(f"ds_write_b128 v{areg}, {vr(r0,4)} offset:{off}")
def conv2(r, emb=None):
    for kt in range(2):
        for u in range(2):
            conv(KB + 16 + 16 * r + 8 * kt + 4 * u, aKW2, (2 * r + kt) * 8192 + u * 4096, emb[2 * kt + u] if emb else ())
def capture(fn, *a):
    n = len(st.out); fn(*a); r = [x.text for x in st.out[n:]]; del st.out[n:]; return r
def tr_v(b, emb=None):
    buf = VBUF[b]
    if b == 2: e(f"v_add_u32 v{aVW}, 0x8000, v{aVW}")
    for p in range(4):
        for h in range(2):
            o = VOUT + 4 * ((2 * p + h) & 3)
            if emb:
                for x in emb[2 * p + h]: e(x)
            for jj in range(4):
                e(f"v_perm_b32 v{o+jj}, v{buf+4*(2*jj+1)+p}, v{buf+4*(2*jj)+p}, s{sSEL1 if h else sSEL0}")
            e(f"ds_write_b128 v{aVW}, {vr(o,4)} offset:{min(b,1)*32768+(2*p+h)*1024}")
def bar():
    e("s_waitcnt lgkmcnt(0)"); stamp(); e("s_barrier")
e(f"s_and_b32 s{sIT}, s{sW}, 1")
e(f"s_and_b32 s{sY}, s{sW}, 2")
e(f"s_sub_u32 s{sY}, s{sIT}, s{sY}")
e(f"s_lshl_b32 s{sY}, s{sY}, 13")
e(f"s_add_u32 s{sZ}, s{sY}, s{sKV}")
e(f"s_and_b32 s{sY}, s{sW}, 6")
e(f"s_cmp_lg_u32 s{sY}, 4")
e("s_cbranch_scc1 L_ld0")
load_v(0)
e("L_ld0:")
e("s_barrier")
e(f"s_cmp_ge_u32 s{sW}, 4")
e("s_cbranch_scc1 L_ld1")
load_q(sT0, sT1)
e("L_ld1:")
e(f"s_lshr_b32 s{sY}, s{sW}, 2")
e(f"s_sub_u32 s{sN}, 3, s{sY}")
e(f"s_mov_b32 s{sPR}, 2")
e(f"s_mov_b32 s{sC}, {f32(CSCALE)}")
e(f"s_mov_b32 s{sSEL0}, 0x05040100")
e(f"s_mov_b32 s{sSEL1}, 0x07060302")
e(f"s_mov_b32 s{sTHR}, {f32(2.0**40)}")
e(f"s_mov_b32 s{sFAIL}, 0")
e(f"s_mov_b32 s{sREDO}, 0")
e(f"v_lshl_add_u32 v{vO}, v3, 10, v4")
e(f"v_lshlrev_b32 v{vT}, 7, v{LANE}")
e(f"v_xor_b32 v5, v{LANE}, v3")
e(f"v_lshlrev_b32 v{aKR[0]}, 4, v5")
e(f"v_xor_b32 v{aKR[1]}, 64, v{aKR[0]}")
e(f"v_add_u32 v{aKRh[0]}, 0x10000, v{aKR[0]}")
e(f"v_add_u32 v{aKRh[1]}, 0x10000, v{aKR[1]}")
e(f"v_add_u32 v{aV}, {VBASE}, v{vK}")
e(f"v_add_u32 v{aVh}, 0x10000, v{aV}")
e(f"v_and_b32 v5, 7, v2")
e(f"v_xor_b32 v5, v5, v3")
e(f"v_lshlrev_b32 v5, 4, v5")
e(f"v_lshl_add_u32 v5, v2, 8, v5")
e(f"s_lshl_b32 s{sY}, s{sW}, 5")
e(f"s_and_b32 s{sX}, s{sY}, 64")
e(f"v_xor_b32 v{aKW}, s{sX}, v5")
e(f"s_and_b32 s{sY}, s{sY}, 128")
e(f"s_lshl_b32 s{sX}, s{sIT}, 12")
e(f"s_add_u32 s{sY}, s{sY}, s{sX}")
e(f"v_add_u32 v{aKW}, s{sY}, v{aKW}")
e(f"s_lshl_b32 s{sY}, s{sW}, 6")
e(f"s_and_b32 s{sX}, s{sY}, 64")
e(f"v_xor_b32 v{aKW2}, s{sX}, v5")
e(f"s_and_b32 s{sY}, s{sY}, 128")
e(f"s_add_u32 s{sY}, s{sY}, 32768")
e(f"v_add_u32 v{aKW2}, s{sY}, v{aKW2}")
e(f"s_and_b32 s{sY}, s{sW}, 3")
e(f"s_lshl_b32 s{sY}, s{sY}, 11")
e(f"s_add_u32 s{sK2}, s{sY}, s{sKV}")
e(f"s_sub_u32 s{sY}, s{sZ}, s{sKV}")
e(f"v_add_u32 v{aVW}, s{sY}, v{aV}")
for i in range(4): e(f"v_mov_b32 v{ONES+i}, 0x3f803f80")
e(f"v_mov_b32 v{MO[0]}, 0xff800000")
e(f"v_mov_b32 v{MO[1]}, 0xff800000")

e(f"s_cmp_lt_u32 s{sW}, 6")
e("s_cbranch_scc1 L_c0")
e("s_waitcnt vmcnt(0)")
e("L_c0:")
for kt in range(4):
    e(f"s_waitcnt vmcnt({8+3-kt})")
    conv(KB + 4 * kt, aKW, kt * 8192)
e(f"s_cmp_ge_u32 s{sW}, 4")
e("s_cbranch_scc1 L_stB")
pass
e("s_mov_b64 vcc, -1")
bar()
e("s_branch L_restart")
e("L_stB:")
def bs():
    if OPT["bst"]: stamp()
def w(n): e(f"s_waitcnt vmcnt({n})")
def sp4(l):
    parts = []; cur = []
    for x in l:
        cur.append(x)
        if x.startswith("buffer"): parts.append(cur); cur = []
    k = len(parts) // 4
    return [sum(parts[i*k:(i+1)*k], []) for i in range(4)]
def sp8(l):
    p = sp4(l); return [p[0], [], p[1], [], p[2], [], p[3], []]
if OPT["prio"]: e("s_setprio %d" % OPT["bprio"])
e(f"s_cmp_ge_u32 s{sW}, 6")
e("s_cbranch_scc1 L_Y0")
w(0); tr_v(0); bar()
load_k2(0); load_v(1); load_k2(1); bs()
w(12); bs(); conv2(0); load_k2(2); bar(); bs()
w(8); tr_v(1); w(4); bs(); conv2(1, emb=sp4(capture(load_v, 2))); bar(); bs()
w(8); conv2(2, emb=sp4(capture(load_q, sT0, sT1))); bar(); bs()
w(8); tr_v(2)
e("s_branch L_stE")
e("L_Y0:")
bar()
load_v(1); load_k2(0); bs()
w(4); bs(); tr_v(1, emb=sp8(capture(load_k2, 1))); w(4); conv2(0, emb=sp4(capture(load_v, 2))); load_k2(2); bar(); bs()
w(12); bs(); conv2(1); load_q(sT0, sT1); bar(); bs()
w(12); tr_v(2); w(8); conv2(2); bar(); bs()
e("L_stE:")
e("s_mov_b64 vcc, 0")
bar()
pass

FR = [("K", 0, f) for f in range(8)]
for j in range(9):
    FR += [("K", j + 1, f) for f in range(8)]
    FR += [("V", j, f) for f in range(8)]
FR += [("V", 9, f) for f in range(8)]
NF = len(FR)
DEPTH = OPT["depth"]; WG = OPT["wgran"]
outl = []
def frag_read(F):
    kind, tl, f = FR[F % NF]
    if F < NF and f == 0 and (kind, tl) in (("V", 2), ("V", 4), ("V", 6), ("V", 8)):
        e(f"s_cbranch_vccnz L_bar{tl}")
        e(f"L_barret{tl}:")
        outl.append(tl)
    off = tl * 8192 + f * 1024
    if kind == "K": a = aKR[f & 1] if off < 65536 else aKRh[f & 1]
    else: a = aV if off < 65536 else aVh
    return raw(f"ds_read_b128 {vr(ring(F),4)}, v{a} offset:{off & 65535}", tag=("F", F))

e("L_restart:")
if not OPT["ps"]: e("s_setprio 2")
st.lds_issued = []; st.lds_done = 0
for F in range(DEPTH): e(frag_read(F))
e("s_waitcnt vmcnt(0)")
if OPT["align"]: e(f".p2align {OPT['align']}")
e("L_tile:")
stamp()
e(f"s_add_u32 s{sN0}, s{sT0}, 65536")
e(f"s_add_u32 s{sN1}, s{sT1}, 65536")
e("s_waitcnt vmcnt(%d)" % (0 if OPT["defer"] else 8))
tile_start = len(st.out)

queue = []
def ready(x): return all(d.done for d in x.deps) and st.gap_needed(x) == 0
def fill(budget):
    while budget > 0:
        c = [x for x in queue[:8] if x.cost <= budget and ready(x)]
        if not c: break
        big = [x for x in c if x.cost == budget]
        x = big[0] if big else c[0]
        e(x); queue.remove(x); budget -= x.cost
    return budget
def flush(pred=lambda x: True):
    while True:
        need_ = [x for x in queue if pred(x)]
        if not need_: break
        last = max(queue.index(x) for x in need_)
        cand = [x for x in queue[:last + 1] if all(d.done for d in x.deps)]
        cand.sort(key=lambda x: st.gap_needed(x))
        x = cand[0]; e(x); queue.remove(x)

def softmax_ops(j, sub=False):
    par = j & 1
    ops = []
    for kb in range(2):
        for t in range(2):
            for h in range(2):
                ex = []
                for r in (2 * h, 2 * h + 1):
                    s = Sreg(par, t, kb) + r
                    dep = []
                    if sub:
                        sb = raw(f"v_add_f32 v{s}, v{NEGM+4*t}, v{s}", tag=("sm", j)); ops.append(sb); dep = [sb]
                    x = raw(f"v_exp_f32 v{s}, v{s}", tag=("sm", j), deps=dep); ops.append(x); ex.append(x)
                s = Sreg(par, t, kb) + 2 * h
                ops.append(raw(f"v_cvt_pk_bf16_f32 v{Preg(par,t)+2*kb+h}, v{s}, v{s+1}", tag=("sm", j), deps=ex))
    return ops

Fcur = [0]
def dstore(i, srd=None):
    t, r = i >> 2, i & 3
    return f"buffer_store_dwordx4 {vr(XB+i*4,4)}, v{vO}, s[{sD}:{sD+3}], s{sP1 if t else sP0} offen offset:{r*256} {OPT['store_flags']}"
def group(mfmas, extra=None):
    F = Fcur[0]
    if st.lds_pending(("F", F)):
        st.wait_lds(("F", min(F + WG - 1, F + DEPTH - 1)))
    for i, m in enumerate(mfmas):
        e(m)
        b = 8
        if i == 0 and extra:
            e(extra); b -= 4
        if i == len(mfmas) - 1:
            e(frag_read(F + DEPTH)); b -= 4
            w = st.lds_pending(("F", F + 1))
            if w: b -= 4
            fill(b)
            if w: st.wait_lds(("F", min(F + WG, F + DEPTH)))
        else:
            fill(b)
    Fcur[0] += 1
def qk(j, first=False):
    par = j & 1
    for f in range(8):
        kb, kk = f >> 2, f & 3
        ms = []
        for t in range(2):
            d = vr(Sreg(par, t, kb), 4)
            c = d if kk else ("0" if first or OPT["m0"] else vr(NEGM + 4 * t, 4))
            ms.append(f"v_mfma_f32_16x16x32_bf16 {d}, {vr(ring(Fcur[0]),4)}, {vr(Qreg(t,kk),4)}, {c}")
        if OPT["zq"] and (f & 1): ms.reverse()
        group(ms)
def pv(j, after_group=None):
    par = j & 1
    flush(lambda x: x.tag == ("sm", j))
    for t in range(2):
        d = vr(Lreg(t), 4)
        e(f"v_mfma_f32_16x16x32_bf16 {d}, {vr(Preg(par,t),4)}, {vr(ONES,4)}, {d if j else 0}")
        fill(8)
    for db in range(8):
        ms = []
        for t in range(2):
            d = vr(Oreg(t, db), 4)
            ms.append(f"v_mfma_f32_16x16x32_bf16 {d}, {vr(Preg(par,t),4)}, {vr(ring(Fcur[0]),4)}, {d if j else 0}")
        group(ms, extra=(dstore(j) if OPT["defer"] and db == OPT["st_at"] and j < 8 else None))
        if after_group: after_group(db)

fine()
if OPT["ps"]: e("s_setprio 3")
qk(0, first=True)
if OPT["ps"]: e("s_setprio 0")
if not OPT["m0"]:
    m = [T0, T0 + 1]
    for t in range(2):
        s0 = Sreg(0, t, 0)
        e(f"v_max3_f32 v{m[t]}, v{s0}, v{s0+1}, v{MO[t]}")
        e(f"v_max3_f32 v{m[t]}, v{s0+2}, v{s0+3}, v{m[t]}")
    for t in range(2):
        s0 = Sreg(0, t, 1)
        e(f"v_max3_f32 v{m[t]}, v{s0}, v{s0+1}, v{m[t]}")
        e(f"v_max3_f32 v{m[t]}, v{s0+2}, v{s0+3}, v{m[t]}")
    e(f"v_permlane32_swap_b32 v{m[0]}, v{m[1]}")
    e(f"v_max_f32 v{m[0]}, v{m[0]}, v{m[1]}")
    e(f"v_mov_b32 v{m[1]}, v{m[0]}")
    e(f"v_permlane16_swap_b32 v{m[0]}, v{m[1]}")
    e(f"v_max_f32 v{m[0]}, v{m[0]}, v{m[1]}")
    e(f"v_sub_f32 v{NEGM}, 0, v{m[0]}")
    e(f"v_sub_f32 v{NEGM+4}, 0, v{m[0]}")
    e(f"v_permlane32_swap_b32 v{NEGM}, v{NEGM+4}")
    for t in range(2):
        for r in range(1, 4):
            e(f"v_mov_b32 v{NEGM+4*t+r}, v{NEGM+4*t}")
queue += softmax_ops(0, sub=not OPT["m0"])
for j in range(9):
    fine()
    if OPT["ps"] and j == 0: e("s_setprio 3")
    if OPT["ps"] and j == OPT["kup"]: e("s_setprio 2")
    qk(j + 1)
    if OPT["ps"] and j == 0: e("s_setprio 1")
    if j == OPT["touch_at"] and not OPT["lateq"]:
        e(f"s_cmp_le_u32 s{sN}, 1")
        e("s_cbranch_scc1 L_notouch")
        e(f"buffer_load_dword v{JUNK}, v{vT}, s[{sQ}:{sQ+3}], s{sN0} offen {OPT['t_flags']}")
        e("L_notouch:")
    if j == 8 and not OPT["lateq"]:
        e(f"s_cmp_le_u32 s{sN}, 1")
        e("s_cbranch_scc1 L_noq")
        load_q(sN0, sN1)
        e("L_noq:")
    flush(lambda x: x.tag == ("sm", j))
    queue += softmax_ops(j + 1)
    pv(j)
RINV = [[T0 + 4 * t + r for r in range(4)] for t in range(2)]
PK = XB if OPT['defer'] else S
epi = {}
def after9(db):
    if db == 0:
        for t in range(2):
            for r in range(4):
                x = raw(f"v_rcp_f32 v{RINV[t][r]}, v{Lreg(t)+r}", tag="ep"); queue.append(x); epi[("r", t, r)] = x
        a = raw(f"v_max3_f32 v{NEGM}, v{L}, v{L+1}, v{L+2}", tag="ep"); queue.append(a)
        b = raw(f"v_max3_f32 v{NEGM+1}, v{L+3}, v{L+4}, v{L+5}", tag="ep"); queue.append(b)
        c = raw(f"v_max3_f32 v{NEGM}, v{L+6}, v{L+7}, v{NEGM}", tag="ep", deps=[a]); queue.append(c)
        d = raw(f"v_max_f32 v{NEGM}, v{NEGM}, v{NEGM+1}", tag="ep", deps=[b, c]); queue.append(d)
        queue.append(raw(f"v_cmp_lt_f32 vcc, s{sTHR}, v{NEGM}", tag="ep", deps=[d]))
fine()
pv(9, after_group=after9)
fine()
if OPT["ps"]: e("s_setprio 0")
elif OPT["prio"]:
    e(f"s_cmp_eq_u32 s{sPR}, 2")
    e("s_setprio 0")
    e("s_cbranch_scc0 L_pr0")
    e("s_setprio 1")
    e("L_pr0:")
    e(f"s_mov_b32 s{sPR}, 1")
if OPT["lateq"]:
    e(f"s_cmp_le_u32 s{sN}, 1")
    e("s_cbranch_scc1 L_noq")
    load_q(sN0, sN1)
    e("L_noq:")
flush()
for t in range(2):
    for r in range(4):
        for db in range(8):
            o = Oreg(t, db) + r
            e(f"v_mul_f32 v{o}, v{RINV[t][r]}, v{o}")
        for h in range(4):
            e(f"v_cvt_pk_bf16_f32 v{PK+(t*4+r)*4+h}, v{Oreg(t,2*h)+r}, v{Oreg(t,2*h+1)+r}")
        if not OPT["defer"]:
            e(f"buffer_store_dwordx4 {vr(PK+(t*4+r)*4,4)}, v{vO}, s[{sO}:{sO+3}], s{sT1 if t else sT0} offen offset:{r*256} {OPT['store_flags']}")
if OPT["defer"]:
    e(f"s_mov_b32 s{sP0}, s{sT0}"); e(f"s_mov_b32 s{sP1}, s{sT1}"); e(f"s_mov_b32 s{sD+2}, 41943040")
fine()
if OPT["stwait"]:
    e("s_waitcnt vmcnt(0)"); fine()
fine_flush()
e(f"s_cmp_lg_u64 vcc, 0")
e(f"s_cselect_b32 s{sX}, 1, 0")
e(f"s_lshl_b32 s{sX}, s{sX}, s{sN}")
e(f"s_or_b32 s{sFAIL}, s{sFAIL}, s{sX}")
e("s_mov_b64 vcc, 0")
e(f"s_mov_b32 s{sT0}, s{sN0}")
e(f"s_mov_b32 s{sT1}, s{sN1}")
e(f"s_sub_u32 s{sN}, s{sN}, 1")
e(f"s_cmp_lg_u32 s{sN}, 0")
tile_end = len(st.out)
e("s_cbranch_scc1 L_tile")
assert Fcur[0] == NF
body = st.out[tile_start:tile_end]
assert check(body + body) == 0
if OPT["defer"]:
    for i in range(8): e(dstore(i))
    e(f"s_mov_b32 s{sD+2}, 0")
e(f"s_cmp_lg_u32 s{sREDO}, 0")
e(f"s_cselect_b32 s{sFAIL}, s{sREDO}, s{sFAIL}")
e(f"s_and_b32 s{sFAIL}, s{sFAIL}, 14")
e(f"s_cmp_eq_u32 s{sFAIL}, 0")
e("s_cbranch_scc1 L_done")
e(f"s_ff1_i32_b32 s{sX}, s{sFAIL}")
e(f"s_bitset0_b32 s{sFAIL}, s{sX}")
e(f"s_or_b32 s{sREDO}, s{sFAIL}, 1")
e(f"s_lshr_b32 s{sY}, s{sW}, 2")
e(f"s_sub_u32 s{sY}, 3, s{sY}")
e(f"s_sub_u32 s{sY}, s{sY}, s{sX}")
e(f"s_lshl_b32 s{sY}, s{sY}, 16")
e(f"s_add_u32 s{sT0}, s{sBASE}, s{sY}")
e(f"s_add_u32 s{sT1}, s{sT0}, 4096")
e(f"s_mov_b32 s{sN}, 1")
e("s_waitcnt vmcnt(0) lgkmcnt(0)")
load_q(sT0, sT1)
e(f"v_mov_b32 v{MO[0]}, 0xff800000")
e(f"v_mov_b32 v{MO[1]}, 0xff800000")
e(f"v_mov_b32 v{T0}, v{aKR[0]}")
e(f"v_mov_b32 v{T0+1}, v{aKR[1]}")
e(f"s_mov_b32 s{sIT}, 0")
e("s_waitcnt vmcnt(0)")
e("L_pre:")
for f in range(8):
    e(f"ds_read_b128 {vr(RING+4*f,4)}, v{T0+(f&1)} offset:{f*1024}")
e("s_waitcnt lgkmcnt(0)")
for f in range(8):
    kb, kk = f >> 2, f & 3
    for t in range(2):
        d = vr(Sreg(0, t, kb), 4)
        e(f"v_mfma_f32_16x16x32_bf16 {d}, {vr(RING+4*f,4)}, {vr(Qreg(t,kk),4)}, {d if kk else 0}")
e(f"v_add_u32 v{T0}, 0x2000, v{T0}")
e(f"v_add_u32 v{T0+1}, 0x2000, v{T0+1}")
for t in range(2):
    for i in range(4):
        s0 = Sreg(0, t, 0) + 2 * i
        e(f"v_max3_f32 v{MO[t]}, v{s0}, v{s0+1}, v{MO[t]}")
e(f"s_add_u32 s{sIT}, s{sIT}, 1")
e(f"s_cmp_lt_u32 s{sIT}, 10")
e("s_nop 7")
e("s_cbranch_scc1 L_pre")
e("s_branch L_restart")
for tl in outl:
    e(f"L_bar{tl}:")
    e("s_barrier")
    e(f"s_branch L_barret{tl}")
e("L_done:")
if OPT["stamps"]:
    stamp()
    e("s_waitcnt vmcnt(0)")
    stamp()
    e(f"s_lshl_b32 s{sX}, s2, 3")
    e(f"s_add_u32 s{sX}, s{sX}, s{sW}")
    e(f"s_lshl_b32 s{sX}, s{sX}, {9 if OPT['fine'] else 7}")
    e(f"v_lshlrev_b32 v1, 3, v{LANE}")
    e(f"v_cmp_gt_u32 vcc, {64 if OPT['fine'] else 16}, v{LANE}")
    e("s_and_saveexec_b64 s[4:5], vcc")
    e(f"buffer_store_dwordx2 v[{TR0}:{TR1}], v1, s[56:59], s{sX} offen")
e("L_end:")
assert check(st.out) == 0
open(sys.argv[1], "w").write(wrap(st.text(), vgpr=NV, accum=NV, sgpr=100))
nm = sum(1 for i in body if i.kind == "mfma"); nn = sum(states(i) for i in body if i.kind == "nop")
print("tile body: insts", len(body), "mfma", nm, "nop states", nn, "waits", sum(1 for i in body if i.kind == "wait"))
```
